```python
import torch

def _softmax(x, axis=-1):
    return torch.softmax(x, dim=axis)
def _gelu(x):
    return torch.nn.functional.gelu(x, approximate="tanh")
def _silu(x):
    return torch.nn.functional.silu(x)
def _sigmoid(x):
    return torch.sigmoid(x)
def _layernorm(x, axis=-1, eps=1e-5):
    m = x.mean(dim=axis, keepdim=True)
    v = x.var(dim=axis, keepdim=True, unbiased=False)
    return (x - m) / torch.sqrt(v + eps)
def _scatter_add(tgt, idx, src, axis=0):
    return tgt.clone().index_add_(axis, idx, src)
def _segment_sum(src, seg, n):
    out = torch.zeros((n,) + src.shape[1:], dtype=src.dtype)
    return out.index_add_(0, seg, src)
def _pad(x, pw):
    flat = tuple(v for pair in reversed(pw) for v in pair)
    return torch.nn.functional.pad(x, flat)

kernel_name = 'gated_mix__spectral_gfnet__swiglu_ffn__prompt'

def setup_inputs():

    _w = (lambda a: (lambda t: t.to(torch.bfloat16) if t.is_floating_point() else t)(torch.as_tensor(a)))
    def _A_setup():
        B, S, D = 1, 2048, 512
        Df = D // 2 + 1
        return {
            "x": _w((lambda *s: torch.randn(*s, dtype=torch.bfloat16) * 0.05)(B, S, D)),
            "w_r": _w((lambda *s: torch.randn(*s, dtype=torch.bfloat16) * 0.8)(S, Df) * 0.02),
            "w_i": _w((lambda *s: torch.randn(*s, dtype=torch.bfloat16) * 0.8)(S, Df) * 0.02),
        }
    _A_in = _A_setup()

    def _B_setup():
        B, S, D, F = 1, 2048, 512, 1376
        return {
            "x": _w((lambda *s: torch.randn(*s, dtype=torch.bfloat16) * 0.05)(B, S, D)),
            "w_gate": _w((lambda *s: torch.randn(*s, dtype=torch.bfloat16) * 0.05)(D, F)),
            "w_up": _w((lambda *s: torch.randn(*s, dtype=torch.bfloat16) * 0.05)(D, F)),
            "w_down": _w((lambda *s: torch.randn(*s, dtype=torch.bfloat16) * 0.05)(F, D)),
        }
    _B_in = _B_setup()

    return {
        "A_x": _A_in["x"],
        "A_w_r": _A_in["w_r"],
        "A_w_i": _A_in["w_i"],
        "B_x": _B_in["x"],
        "B_w_gate": _B_in["w_gate"],
        "B_w_up": _B_in["w_up"],
        "B_w_down": _B_in["w_down"],
        "gate_w": _w((lambda *s: torch.randn(*s, dtype=torch.bfloat16) * 0.05)(512) * 16.0),
    }

def reference(A_x, A_w_r, A_w_i, B_x, B_w_gate, B_w_up, B_w_down, gate_w):
    def _A_ref(x, w_r, w_i):
        B, S, D = x.shape
        X = (lambda x, axes=(-2,-1): torch.fft.rfft2(x.float(), dim=axes))(x, axes=(-2, -1))
        W = w_r + 1j * w_i
        X = X * W
        y = (lambda x, s, axes=(-2,-1): torch.fft.irfft2(x, s=s, dim=axes).to(torch.bfloat16))(X, (S, D), axes=(-2, -1))
        return y

    def _B_ref(x, w_gate, w_up, w_down):
        g = _silu(x @ w_gate)
        u = x @ w_up
        return (g * u) @ w_down

    x = A_x
    g = _sigmoid((x * gate_w).sum(-1, keepdims=True))
    a = _A_ref(x, A_w_r, A_w_i)
    b = _B_ref(x, B_w_gate, B_w_up, B_w_down)
    return g * a + (1 - g) * b
```

```python
import re

TRANS = ("v_exp_f32", "v_log_f32", "v_rcp_f32", "v_rsq_f32", "v_sqrt_f32", "v_sin_f32", "v_cos_f32")


def _regs(tok):
    tok = tok.strip()
    tok = tok.replace("-", "").replace("|", "")
    m = re.fullmatch(r"abs\((.*)\)", tok)
    if m:
        tok = m.group(1)
    m = re.fullmatch(r"([vsa])\[(\d+):(\d+)\]", tok)
    if m:
        return {f"{m.group(1)}{i}" for i in range(int(m.group(2)), int(m.group(3)) + 1)}
    if re.fullmatch(r"[vsa]\d+", tok):
        return {tok}
    if tok in ("vcc", "vcc_lo", "vcc_hi"):
        return {"vcc"}
    if tok in ("exec", "exec_lo", "exec_hi"):
        return {"exec"}
    if tok == "m0":
        return {"m0"}
    return set()


class Ins:
    __slots__ = ("op", "dst", "src", "kind", "states", "srcC", "srcAB", "passes", "dpp", "storedata", "lds_dma")


class Asm:
    def __init__(self):
        self.lines = []
        self.hist = []
        self.nlabel = 0

    def raw(self, s):
        self.lines.append(s)

    def comment(self, s):
        self.lines.append("    ; " + s)

    def label(self, name):
        self.lines.append(name + ":")
        self.hist = []

    def newlabel(self, base="L"):
        self.nlabel += 1
        return f"{base}_{self.nlabel}"

    def _parse(self, s):
        s = s.strip()
        parts = s.split(None, 1)
        op = parts[0]
        rest = parts[1] if len(parts) > 1 else ""
        ops = [o.strip() for o in rest.split(",")] if rest else []
        mods = ""
        if ops:
            last = ops[-1].split()
            if len(last) > 1:
                ops[-1] = last[0]
                mods = " ".join(last[1:])
        i = Ins()
        i.op = op
        i.dst = set()
        i.src = set()
        i.states = 1
        i.srcC = set()
        i.srcAB = set()
        i.passes = 0
        i.dpp = ("_dpp" in op) or ("row_" in mods) or ("quad_perm" in mods)
        i.storedata = set()
        i.lds_dma = False
        R = [_regs(o) for o in ops]
        if op == "s_nop":
            i.kind = "nop"
            i.states = int(ops[0], 0) + 1
        elif op.startswith("v_mfma"):
            i.kind = "mfma"
            i.dst = R[0]
            i.srcAB = R[1] | R[2]
            i.srcC = R[3]
            i.src = i.srcAB | i.srcC
            i.passes = 8 if "32x32" in op else 4
        elif op.startswith("v_cmp"):
            i.kind = "valu"
            i.dst = R[0]
            i.src = set().union(*R[1:])
        elif op.startswith("v_permlane"):
            i.kind = "valu"
            i.dst = R[0] | R[1]
            i.src = R[0] | R[1]
        elif op.startswith("v_readfirstlane") or op.startswith("v_readlane"):
            i.kind = "valu"
            i.dst = R[0]
            i.src = set().union(*R[1:])
        elif op.startswith("v_"):
            i.kind = "trans" if op.replace("_e32", "").replace("_e64", "") in TRANS else "valu"
            i.dst = R[0]
            i.src = set().union(*R[1:]) if len(R) > 1 else set()
            if op.startswith("v_fmac") or op.startswith("v_writelane") or "d16" in op:
                i.src |= R[0]
            if op.startswith("v_cndmask") and len(R) == 3:
                i.src |= {"vcc"}
        elif op.startswith("buffer_load") or op.startswith("global_load"):
            i.kind = "vmem"
            if "lds" in mods.split():
                i.lds_dma = True
                i.src = set().union(*R) | {"m0"}
            else:
                i.dst = R[0]
                i.src = set().union(*R[1:])
                if "d16" in op:
                    i.src |= R[0]
        elif op.startswith("buffer_store") or op.startswith("global_store"):
            i.kind = "vmem"
            i.src = set().union(*R)
            if "x4" in op or "x3" in op:
                i.storedata = R[0] if op.startswith("buffer") else R[1]
        elif op.startswith("ds_read") or op.startswith("ds_bpermute") or op.startswith("ds_swizzle"):
            i.kind = "ds"
            i.dst = R[0]
            i.src = set().union(*R[1:])
        elif op.startswith("ds_"):
            i.kind = "ds"
            i.src = set().union(*R)
        elif op.startswith("s_"):
            i.kind = "salu"
            if op.startswith(("s_cmp", "s_waitcnt", "s_barrier", "s_cbranch", "s_branch", "s_endpgm", "s_setprio")):
                i.src = set().union(*R) if R else set()
            else:
                i.dst = R[0] if R else set()
                i.src = set().union(*R[1:]) if len(R) > 1 else set()
                if "saveexec" in op:
                    i.dst |= {"exec"}
        else:
            raise ValueError("unknown op " + s)
        return i

    def _need(self, new):
        need = 0
        dist = 0
        for p in reversed(self.hist):
            req = 0
            if p.kind in ("valu", "trans"):
                vg = {r for r in p.dst if r[0] == "v" and r != "vcc"}
                sg = {r for r in p.dst if r[0] == "s" or r == "vcc"}
                if new.kind == "mfma" and vg & new.src:
                    req = max(req, 2)
                if p.kind == "trans" and new.kind in ("valu", "mfma", "vmem", "ds") and vg & (new.src | new.dst):
                    req = max(req, 1)
                if new.dpp and vg & new.src:
                    req = max(req, 2)
                if new.op.startswith(("v_readlane", "v_readfirstlane")) and vg & new.src:
                    req = max(req, 1)
                if new.op.startswith("v_permlane") and vg & new.src:
                    req = max(req, 2)
                if sg & new.src:
                    if new.kind in ("valu", "trans", "mfma"):
                        req = max(req, 2)
                        if new.op.startswith(("v_readlane", "v_writelane")):
                            req = max(req, 4)
                    elif new.kind == "vmem":
                        req = max(req, 5)
                    elif new.kind == "salu":
                        req = max(req, 1)
                if "exec" in p.dst:
                    req = max(req, 5)
            elif p.kind == "mfma":
                big = 12 if p.passes == 8 else 8
                if new.kind == "mfma":
                    if p.dst & new.srcAB:
                        req = max(req, big)
                    if p.dst & new.srcC:
                        if p.dst == new.srcC and p.passes == new.passes:
                            pass
                        else:
                            req = max(req, big - 2)
                elif new.kind in ("valu", "trans", "vmem", "ds"):
                    if p.dst & (new.src | new.dst):
                        req = max(req, big)
                    if new.kind in ("valu", "trans") and p.srcC & new.dst:
                        req = max(req, 7 if p.passes == 8 else 3)
            elif p.kind == "salu":
                if "m0" in p.dst and new.lds_dma:
                    req = max(req, 1)
            elif p.kind == "vmem":
                if p.storedata and p.storedata & new.dst:
                    req = max(req, 2)
            if req > dist:
                need = max(need, req - dist)
            dist += p.states
            if dist > 24:
                break
        return need

    def emit(self, s):
        new = self._parse(s)
        n = self._need(new)
        while n > 0:
            k = min(n, 16)
            nop = self._parse(f"s_nop {k-1}")
            self.lines.append(f"    s_nop {k-1}")
            self.hist.append(nop)
            n -= k
        self.lines.append("    " + s)
        self.hist.append(new)
        if len(self.hist) > 40:
            self.hist = self.hist[-30:]

    def __call__(self, s):
        for line in s.strip().split("\n"):
            line = line.strip()
            if not line or line.startswith(";"):
                continue
            self.emit(line)

    def text(self):
        return "\n".join(self.lines) + "\n"


class RegPool:
    def __init__(self, lo, hi):
        self.free = set(range(lo, hi))
        self.hiwater = lo

    def alloc(self, n=1, align=1):
        r = sorted(self.free)
        for b in r:
            if b % align:
                continue
            if all((b + i) in self.free for i in range(n)):
                for i in range(n):
                    self.free.discard(b + i)
                self.hiwater = max(self.hiwater, b + n)
                return b
        raise RuntimeError("out of VGPRs")

    def release(self, b, n=1):
        for i in range(n):
            assert (b + i) not in self.free, f"double free v{b+i}"
            self.free.add(b + i)
```

```python
class Val:
    __slots__ = ("r", "neg")

    def __init__(self, r, neg=False):
        self.r = r
        self.neg = neg

    def __neg__(self):
        return Val(self.r, not self.neg)

    def s(self):
        return ("-" if self.neg else "") + f"v{self.r}"


class Cx:
    __slots__ = ("re", "im", "base")

    def __init__(self, re, im, base=None):
        self.re = re
        self.im = im
        self.base = base

    @staticmethod
    def pair(b):
        return Cx(Val(b), Val(b + 1), b)


class FFT:
    def __init__(self, a, pool, s_rsqrt2):
        self.a = a
        self.pool = pool
        self.sr = s_rsqrt2

    def newc(self):
        return Cx.pair(self.pool.alloc(2, 2))

    def freec(self, c):
        if c.base is not None:
            self.pool.release(c.base, 2)
            c.base = None

    def _add(self, d, x, y):
        a = self.a
        if not x.neg and not y.neg:
            a(f"v_add_f32 v{d}, v{x.r}, v{y.r}")
            return Val(d)
        if not x.neg and y.neg:
            a(f"v_sub_f32 v{d}, v{x.r}, v{y.r}")
            return Val(d)
        if x.neg and not y.neg:
            a(f"v_sub_f32 v{d}, v{y.r}, v{x.r}")
            return Val(d)
        a(f"v_add_f32 v{d}, v{x.r}, v{y.r}")
        return Val(d, True)

    def add(self, x, y):
        o = self.newc()
        re = self._add(o.base, x.re, y.re)
        im = self._add(o.base + 1, x.im, y.im)
        return Cx(re, im, o.base)

    def sub(self, x, y):
        return self.add(x, Cx(-y.re, -y.im))

    def mul_i(self, x, sgn):
        if sgn > 0:
            return Cx(-x.im, x.re, x.base)
        return Cx(x.im, -x.re, x.base)

    def fma_r(self, f, g, sgn):
        o = self.newc()
        a = self.a
        for k, (fv, gv) in enumerate(((f.re, g.re), (f.im, g.im))):
            gs = gv if sgn > 0 else -gv
            a(f"v_fma_f32 v{o.base+k}, {gs.s()}, {self.sr}, {fv.s()}")
        return o

    def materialize(self, x):
        if (x.base is not None and x.re.r == x.base and x.im.r == x.base + 1
                and not x.re.neg and not x.im.neg):
            return x
        o = self.newc()
        a = self.a
        for k, v in enumerate((x.re, x.im)):
            if v.neg:
                a(f"v_sub_f32 v{o.base+k}, 0, v{v.r}")
            else:
                a(f"v_mov_b32 v{o.base+k}, v{v.r}")
        self.freec(x)
        return o

    def twiddle(self, x, c, s, conj=False):
        a = self.a
        o = self.newc()
        cs = Val(c)
        ss = Val(s, conj)
        a(f"v_mul_f32_e64 v{o.base}, {x.re.s()}, {cs.s()}")
        a(f"v_mul_f32_e64 v{o.base+1}, {x.re.s()}, {ss.s()}")
        a(f"v_fma_f32 v{o.base}, {(-x.im).s()}, {ss.s()}, v{o.base}")
        a(f"v_fma_f32 v{o.base+1}, {x.im.s()}, {cs.s()}, v{o.base+1}")
        self.freec(x)
        return o

    def radix4(self, x, sgn):
        e0 = self.add(x[0], x[2])
        e1 = self.sub(x[0], x[2])
        e2 = self.add(x[1], x[3])
        e3 = self.sub(x[1], x[3])
        for v in x:
            self.freec(v)
        e3r = self.mul_i(e3, sgn)
        X0 = self.add(e0, e2)
        X2 = self.sub(e0, e2)
        X1 = self.add(e1, e3r)
        X3 = self.sub(e1, e3r)
        for v in (e0, e1, e2, e3):
            self.freec(v)
        return [X0, X1, X2, X3]

    def radix8(self, x, sgn):
        s = []
        d = []
        for j in range(4):
            s.append(self.add(x[j], x[j + 4]))
            d.append(self.sub(x[j], x[j + 4]))
            self.freec(x[j])
            self.freec(x[j + 4])
        def rot(dv, re_coef):
            o = self.newc()
            xr = dv.re if re_coef > 0 else -dv.re
            xi = dv.im if re_coef > 0 else -dv.im
            ys = -dv.im if sgn > 0 else dv.im
            xs = dv.re if sgn > 0 else -dv.re
            re = self._add(o.base, xr, ys)
            im = self._add(o.base + 1, xi, xs)
            return Cx(re, im, o.base)
        u1 = rot(d[1], +1)
        u3 = rot(d[3], -1)
        self.freec(d[1])
        self.freec(d[3])
        d2 = self.mul_i(d[2], sgn)
        e0 = self.add(s[0], s[2])
        e1 = self.sub(s[0], s[2])
        e2 = self.add(s[1], s[3])
        e3 = self.sub(s[1], s[3])
        for v in s:
            self.freec(v)
        f0 = self.add(d[0], d2)
        f1 = self.sub(d[0], d2)
        self.freec(d[0])
        self.freec(d[2])
        g2 = self.add(u1, u3)
        g3 = self.sub(u1, u3)
        self.freec(u1)
        self.freec(u3)
        e3r = self.mul_i(e3, sgn)
        g3r = self.mul_i(g3, sgn)
        X = [None] * 8
        X[0] = self.add(e0, e2)
        X[4] = self.sub(e0, e2)
        X[2] = self.add(e1, e3r)
        X[6] = self.sub(e1, e3r)
        X[1] = self.fma_r(f0, g2, +1)
        X[5] = self.fma_r(f0, g2, -1)
        X[3] = self.fma_r(f1, g3r, +1)
        X[7] = self.fma_r(f1, g3r, -1)
        for v in (e0, e1, e2, e3, f0, f1, g2, g3):
            self.freec(v)
        return X

    def gen_twiddles(self, vidx, N, qs=range(1, 8)):
        import struct
        a = self.a
        f = self.pool.alloc()
        a(f"v_cvt_f32_u32 v{f}, v{vidx}")
        out = {}
        for q in qs:
            c = self.pool.alloc()
            s = self.pool.alloc()
            k = struct.unpack("<I", struct.pack("<f", q / N))[0]
            a(f"v_mul_f32 v{s}, 0x{k:08x}, v{f}")
            a(f"v_fract_f32 v{s}, v{s}")
            a(f"v_cos_f32 v{c}, v{s}")
            a(f"v_sin_f32 v{s}, v{s}")
            out[q] = (c, s)
        self.pool.release(f)
        return out
```

```python
import struct
import sys

sys.path.insert(0, "work")
from asmlib import Asm, RegPool
from fftlib import FFT, Cx, Val

NAME = "gated_mix__spectral_gfnet__swiglu_ffn__prompt"

WS_T = 0
WS_T_BYTES = 257 * 2048 * 8
WS_WT = 0x480000
WS_WT_BYTES = 257 * 2048 * 4
WS_H = 0x700000
WS_H_BYTES = 2048 * 1376 * 2
WS_B = 0xD00000
WS_B_BYTES = 2048 * 512 * 2
WS_G = 0xF00000
WS_G_BYTES = 2048 * 4

KA = dict(x=0, wr=8, wi=16, bx=24, wg=32, wu=40, wd=48, gw=56, out=64, dbg=72, ws=80)

S, D, F = 2048, 512, 1376

CFG = dict(
    g1_stages=2, g2_stages=2,
)


def f32bits(x):
    return struct.unpack("<I", struct.pack("<f", x))[0]


def make_srd(a, d, lo, hi, off, nbytes):
    if off:
        a(f"s_add_u32 s{d}, s{lo}, 0x{off:x}")
        a(f"s_addc_u32 s{d+1}, s{hi}, 0")
    else:
        a(f"s_mov_b32 s{d}, s{lo}")
        a(f"s_mov_b32 s{d+1}, s{hi}")
    a(f"s_mov_b32 s{d+2}, 0x{nbytes:x}")
    a(f"s_mov_b32 s{d+3}, 0x00020000")


def fft512_wave(a, fft, pool, x, sgn, v_lane, v_scr):
    conj = sgn < 0
    a_w1 = pool.alloc()
    a_r1 = pool.alloc()
    a_r2 = pool.alloc()
    t0 = pool.alloc()
    t1 = pool.alloc()
    a(f"v_lshl_add_u32 v{a_w1}, v{v_lane}, 3, v{v_scr}")
    a(f"v_lshrrev_b32 v{t0}, 3, v{v_lane}")
    a(f"v_and_b32 v{t1}, 7, v{v_lane}")
    a(f"v_mul_u32_u24 v{t0}, 72, v{t0}")
    a(f"v_add_u32 v{a_r1}, v{t0}, v{t1}")
    a(f"v_lshl_add_u32 v{a_r1}, v{a_r1}, 3, v{v_scr}")
    a(f"v_mul_u32_u24 v{a_r2}, 9, v{t1}")
    a(f"v_add_u32 v{a_r2}, v{a_r2}, v{t0}")
    a(f"v_lshl_add_u32 v{a_r2}, v{a_r2}, 3, v{v_scr}")
    tw1 = fft.gen_twiddles(v_lane, 512)
    tw2 = fft.gen_twiddles(t1, 64)
    pool.release(t0)
    pool.release(t1)
    X = fft.radix8(x, sgn)
    for q in range(8):
        if q:
            X[q] = fft.twiddle(X[q], tw1[q][0], tw1[q][1], conj)
        else:
            X[q] = fft.materialize(X[q])
        a(f"ds_write_b64 v{a_w1}, v[{X[q].base}:{X[q].base+1}] offset:{q*576}")
        fft.freec(X[q])
    for q in tw1:
        pool.release(tw1[q][0]); pool.release(tw1[q][1])
    y = [fft.newc() for _ in range(8)]
    a("s_waitcnt lgkmcnt(0)")
    for m in range(8):
        a(f"ds_read_b64 v[{y[m].base}:{y[m].base+1}], v{a_r1} offset:{m*64}")
    a("s_waitcnt lgkmcnt(0)")
    X = fft.radix8(y, sgn)
    for q in range(8):
        if q:
            X[q] = fft.twiddle(X[q], tw2[q][0], tw2[q][1], conj)
        else:
            X[q] = fft.materialize(X[q])
        a(f"ds_write_b64 v{a_r1}, v[{X[q].base}:{X[q].base+1}] offset:{q*72}")
        fft.freec(X[q])
    for q in tw2:
        pool.release(tw2[q][0]); pool.release(tw2[q][1])
    y = [fft.newc() for _ in range(8)]
    a("s_waitcnt lgkmcnt(0)")
    for j in range(8):
        a(f"ds_read_b64 v[{y[j].base}:{y[j].base+1}], v{a_r2} offset:{j*8}")
    a("s_waitcnt lgkmcnt(0)")
    X = fft.radix8(y, sgn)
    X = [fft.materialize(v) for v in X]
    for r in (a_w1, a_r1, a_r2):
        pool.release(r)
    return X


ROW_SCR = 4608
ROW_PITCH = 520
ROW_STG = 4 * ROW_SCR
ROW_LDS = ROW_STG + 4 * ROW_PITCH * 8


def k1_rowfft(a):
    pool = RegPool(1, 128)
    fft = FFT(a, pool, "s30")
    a(f"""
    s_load_dwordx2 s[4:5], s[0:1], {KA['x']}
    s_load_dwordx4 s[8:11], s[0:1], {KA['wr']}
    s_load_dwordx2 s[6:7], s[0:1], {KA['gw']}
    s_load_dwordx2 s[12:13], s[0:1], {KA['ws']}
    s_mov_b32 s30, 0x{f32bits(0.7071067811865476):08x}
    """)
    v_lane = pool.alloc()
    v_wave = pool.alloc()
    a(f"v_and_b32 v{v_lane}, 63, v0")
    a(f"v_lshrrev_b32 v{v_wave}, 6, v0")
    a(f"v_readfirstlane_b32 s3, v{v_wave}")
    a("s_waitcnt lgkmcnt(0)")
    make_srd(a, 16, 4, 5, 0, S * D * 2)
    make_srd(a, 20, 6, 7, 0, D * 2)
    make_srd(a, 24, 12, 13, WS_T, WS_T_BYTES)
    make_srd(a, 32, 12, 13, WS_G, WS_G_BYTES)
    make_srd(a, 36, 8, 9, 0, S * 257 * 2)
    make_srd(a, 40, 10, 11, 0, S * 257 * 2)
    make_srd(a, 44, 12, 13, WS_WT, WS_WT_BYTES)
    a("s_lshl_b32 s14, s2, 3")
    a("s_lshl_b32 s15, s3, 1")
    a("s_add_u32 s14, s14, s15")
    a("s_lshl_b32 s15, s14, 10")
    a("s_add_u32 s28, s15, 1024")
    v_off2 = pool.alloc()
    a(f"v_lshlrev_b32 v{v_off2}, 1, v{v_lane}")
    x = [fft.newc() for _ in range(8)]
    gw = [pool.alloc() for _ in range(8)]
    for m in range(8):
        a(f"v_mov_b32 v{x[m].base}, 0")
        a(f"v_mov_b32 v{x[m].base+1}, 0")
        a(f"v_mov_b32 v{gw[m]}, 0")
    for m in range(8):
        a(f"buffer_load_short_d16_hi v{x[m].base}, v{v_off2}, s[16:19], s15 offen offset:{m*128}")
        a(f"buffer_load_short_d16_hi v{x[m].base+1}, v{v_off2}, s[16:19], s28 offen offset:{m*128}")
    for m in range(8):
        a(f"buffer_load_short_d16_hi v{gw[m]}, v{v_off2}, s[20:23], 0 offen offset:{m*128}")
    wre = [pool.alloc() for _ in range(8)]
    wq = pool.alloc(8, 4)
    v_t2 = pool.alloc()
    a(f"v_lshlrev_b32 v{v_t2}, 1, v0")
    a("s_mul_i32 s29, s2, 4112")
    for i in range(8):
        a(f"s_add_u32 s31, s29, {i*514}")
        a(f"buffer_load_ushort v{wre[i]}, v{v_t2}, s[36:39], s31 offen")
        a(f"buffer_load_ushort v{wq+i}, v{v_t2}, s[40:43], s31 offen")
    a("s_waitcnt vmcnt(16)")
    accA = pool.alloc()
    accB = pool.alloc()
    t0 = pool.alloc()
    t1 = pool.alloc()
    t2 = pool.alloc()
    for m in range(8):
        a(f"v_mul_f32 v{t0}, v{x[m].base}, v{gw[m]}")
        a(f"v_mul_f32 v{t1}, v{x[m].base+1}, v{gw[m]}")
        a(f"v_cvt_pk_bf16_f32 v{t2}, v{t0}, v{t1}")
        a(f"v_lshlrev_b32 v{t0}, 16, v{t2}")
        a(f"v_and_b32 v{t1}, 0xffff0000, v{t2}")
        if m == 0:
            a(f"v_mov_b32 v{accA}, v{t0}")
            a(f"v_mov_b32 v{accB}, v{t1}")
        else:
            a(f"v_add_f32 v{accA}, v{accA}, v{t0}")
            a(f"v_add_f32 v{accB}, v{accB}, v{t1}")
    for g in gw:
        pool.release(g)
    for acc in (accA, accB):
        for sh in (1, 2, 4, 8):
            a(f"v_add_f32_dpp v{acc}, v{acc}, v{acc} row_shr:{sh} row_mask:0xf bank_mask:0xf bound_ctrl:0")
        a(f"v_add_f32_dpp v{acc}, v{acc}, v{acc} row_bcast:15 row_mask:0xa bank_mask:0xf")
        a(f"v_add_f32_dpp v{acc}, v{acc}, v{acc} row_bcast:31 row_mask:0xc bank_mask:0xf")
    gp = pool.alloc(2, 2)
    a(f"v_cvt_pk_bf16_f32 v{t2}, v{accA}, v{accB}")
    a(f"v_lshlrev_b32 v{t0}, 16, v{t2}")
    a(f"v_and_b32 v{t1}, 0xffff0000, v{t2}")
    l2e = f32bits(-1.4426950408889634)
    for k, t in enumerate((t0, t1)):
        a(f"v_mul_f32 v{t}, 0x{l2e:08x}, v{t}")
        a(f"v_exp_f32 v{t}, v{t}")
        a(f"v_add_f32 v{t}, 1.0, v{t}")
        a(f"v_rcp_f32 v{t}, v{t}")
    a(f"v_cvt_pk_bf16_f32 v{t2}, v{t0}, v{t1}")
    a(f"v_lshlrev_b32 v{gp}, 16, v{t2}")
    a(f"v_and_b32 v{gp+1}, 0xffff0000, v{t2}")
    a(f"v_mov_b32 v{t0}, 0")
    a("s_lshl_b32 s31, s14, 2")
    a("s_mov_b32 exec_lo, 0")
    a("s_mov_b32 exec_hi, 0x80000000")
    a(f"buffer_store_dwordx2 v[{gp}:{gp+1}], v{t0}, s[32:35], s31 offen")
    a("s_mov_b64 exec, -1")
    for r in (accA, accB, t0, t1, t2):
        pool.release(r)
    pool.release(gp, 2)
    v_scr = pool.alloc()
    a(f"v_mul_u32_u24 v{v_scr}, {ROW_SCR}, v{v_wave}")
    X = fft512_wave(a, fft, pool, x, -1, v_lane, v_scr)
    v_st = pool.alloc()
    t0 = pool.alloc()
    a(f"v_lshrrev_b32 v{v_st}, 3, v{v_lane}")
    a(f"v_and_b32 v{t0}, 7, v{v_lane}")
    a(f"v_lshl_add_u32 v{v_st}, v{t0}, 3, v{v_st}")
    a(f"v_mul_u32_u24 v{t0}, {ROW_PITCH}, v{v_wave}")
    a(f"v_add_u32 v{v_st}, v{v_st}, v{t0}")
    a(f"v_lshlrev_b32 v{v_st}, 3, v{v_st}")
    for q in range(8):
        a(f"ds_write_b64 v{v_st}, v[{X[q].base}:{X[q].base+1}] offset:{ROW_STG + q*512}")
    a("s_mov_b64 exec, 1")
    a(f"ds_write_b64 v{v_st}, v[{X[0].base}:{X[0].base+1}] offset:{ROW_STG + 512*8}")
    a("s_mov_b64 exec, -1")
    for q in range(8):
        fft.freec(X[q])
    pool.release(v_st)
    pool.release(t0)
    a("s_waitcnt vmcnt(1)")
    for i in range(8):
        a(f"v_lshl_or_b32 v{wq+i}, v{wq+i}, 16, v{wre[i]}")
    v_wo = pool.alloc()
    a(f"v_lshlrev_b32 v{v_wo}, 13, v0")
    a("s_lshl_b32 s31, s2, 5")
    a(f"buffer_store_dwordx4 v[{wq}:{wq+3}], v{v_wo}, s[44:47], s31 offen")
    a(f"buffer_store_dwordx4 v[{wq+4}:{wq+7}], v{v_wo}, s[44:47], s31 offen offset:16")
    lab = a.newlabel("K1W256")
    a("v_cmp_gt_u32 vcc, 8, v0")
    a("s_and_saveexec_b64 s[48:49], vcc")
    a(f"s_cbranch_execz {lab}")
    a(f"v_mul_u32_u24 v{v_t2}, 514, v0")
    a("s_add_u32 s31, s29, 512")
    a(f"buffer_load_ushort v{wre[0]}, v{v_t2}, s[36:39], s31 offen")
    a(f"buffer_load_ushort v{wre[1]}, v{v_t2}, s[40:43], s31 offen")
    a(f"v_lshlrev_b32 v{v_wo}, 2, v0")
    a("s_lshl_b32 s31, s2, 5")
    a("s_add_u32 s31, s31, 0x200000")
    a("s_waitcnt vmcnt(0)")
    a(f"v_lshl_or_b32 v{wre[0]}, v{wre[1]}, 16, v{wre[0]}")
    a(f"buffer_store_dword v{wre[0]}, v{v_wo}, s[44:47], s31 offen")
    a.label(lab)
    a("s_mov_b64 exec, -1")
    for r in wre:
        pool.release(r)
    pool.release(wq, 8)
    pool.release(v_wo)
    pool.release(v_t2)
    a("s_waitcnt lgkmcnt(0)")
    a("s_barrier")
    v_p = pool.alloc()
    v_kk = pool.alloc()
    v_a1 = pool.alloc()
    v_a2 = pool.alloc()
    v_go = pool.alloc()
    a(f"v_and_b32 v{v_p}, 3, v0")
    a(f"v_lshrrev_b32 v{v_kk}, 2, v0")
    a(f"v_mul_u32_u24 v{v_a1}, {ROW_PITCH}, v{v_p}")
    a(f"v_sub_u32 v{v_a2}, v{v_a1}, v{v_kk}")
    a(f"v_add_u32 v{v_a1}, v{v_a1}, v{v_kk}")
    a(f"v_lshlrev_b32 v{v_a1}, 3, v{v_a1}")
    a(f"v_add_u32 v{v_a2}, {512-256}, v{v_a2}")
    a(f"v_lshlrev_b32 v{v_a2}, 3, v{v_a2}")
    a(f"v_lshlrev_b32 v{v_go}, 14, v{v_kk}")
    a(f"v_lshl_add_u32 v{v_go}, v{v_p}, 4, v{v_go}")
    a("s_lshl_b32 s29, s2, 6")
    C = [fft.newc() for _ in range(4)]
    M = [fft.newc() for _ in range(4)]
    for r in range(4):
        a(f"ds_read_b64 v[{C[r].base}:{C[r].base+1}], v{v_a1} offset:{ROW_STG + r*512}")
        a(f"ds_read_b64 v[{M[r].base}:{M[r].base+1}], v{v_a2} offset:{ROW_STG + (256 - 64*r)*8}")
    O = [pool.alloc(4, 4) for _ in range(4)]
    for r in range(4):
        a(f"s_waitcnt lgkmcnt({6-2*r})")
        c, m, o = C[r].base, M[r].base, O[r]
        a(f"v_add_f32 v{o}, v{c}, v{m}")
        a(f"v_sub_f32 v{o+1}, v{c+1}, v{m+1}")
        a(f"v_add_f32 v{o+2}, v{c+1}, v{m+1}")
        a(f"v_sub_f32 v{o+3}, v{m}, v{c}")
        a(f"s_add_u32 s31, s29, 0x{r*64*16384:x}")
        a(f"buffer_store_dwordx4 v[{o}:{o+3}], v{v_go}, s[24:27], s31 offen")
    lab = a.newlabel("K1O256")
    a("v_cmp_gt_u32 vcc, 4, v0")
    a("s_and_saveexec_b64 s[48:49], vcc")
    a(f"s_cbranch_execz {lab}")
    c, o = C[0].base, O[0]
    a(f"ds_read_b64 v[{c}:{c+1}], v{v_a1} offset:{ROW_STG + 256*8}")
    a("s_waitcnt lgkmcnt(0)")
    a(f"v_add_f32 v{o}, v{c}, v{c}")
    a(f"v_mov_b32 v{o+1}, 0")
    a(f"v_add_f32 v{o+2}, v{c+1}, v{c+1}")
    a(f"v_mov_b32 v{o+3}, 0")
    a(f"s_add_u32 s31, s29, 0x{256*16384:x}")
    a(f"buffer_store_dwordx4 v[{o}:{o+3}], v{v_go}, s[24:27], s31 offen")
    a.label(lab)
    a("s_endpgm")
    return pool.hiwater


def k3_body(a):
    pool = RegPool(1, 128)
    fft = FFT(a, pool, "s30")
    a(f"""
    s_load_dwordx2 s[4:5], s[0:1], {KA['out']}
    s_load_dwordx2 s[12:13], s[0:1], {KA['ws']}
    s_mov_b32 s30, 0x{f32bits(0.7071067811865476):08x}
    """)
    v_lane = pool.alloc()
    v_wave = pool.alloc()
    a(f"v_and_b32 v{v_lane}, 63, v0")
    a(f"v_lshrrev_b32 v{v_wave}, 6, v0")
    a(f"v_readfirstlane_b32 s3, v{v_wave}")
    a("s_waitcnt lgkmcnt(0)")
    make_srd(a, 16, 4, 5, 0, S * D * 2)
    make_srd(a, 24, 12, 13, WS_T, WS_T_BYTES)
    make_srd(a, 20, 12, 13, WS_B, WS_B_BYTES)
    a("s_lshl_b32 s14, s2, 3")
    a("s_lshl_b32 s15, s3, 1")
    a("s_add_u32 s14, s14, s15")
    a("s_lshl_b32 s15, s14, 10")
    a("s_add_u32 s28, s15, 1024")
    a("s_lshl_b32 s31, s14, 2")
    a(f"s_add_u32 s31, s31, 0x{WS_G:x}")
    a("s_add_u32 s34, s12, s31")
    a("s_addc_u32 s35, s13, 0")
    a("s_load_dwordx2 s[36:37], s[34:35], 0")
    v_p = pool.alloc()
    v_kk = pool.alloc()
    v_a1 = pool.alloc()
    v_a2 = pool.alloc()
    v_go = pool.alloc()
    a(f"v_and_b32 v{v_p}, 3, v0")
    a(f"v_lshrrev_b32 v{v_kk}, 2, v0")
    a(f"v_mul_u32_u24 v{v_a1}, {ROW_PITCH}, v{v_p}")
    a(f"v_sub_u32 v{v_a2}, v{v_a1}, v{v_kk}")
    a(f"v_add_u32 v{v_a1}, v{v_a1}, v{v_kk}")
    a(f"v_lshlrev_b32 v{v_a1}, 3, v{v_a1}")
    a(f"v_add_u32 v{v_a2}, {512-256}, v{v_a2}")
    a(f"v_lshlrev_b32 v{v_a2}, 3, v{v_a2}")
    a(f"v_lshlrev_b32 v{v_go}, 14, v{v_kk}")
    a(f"v_lshl_add_u32 v{v_go}, v{v_p}, 4, v{v_go}")
    a("s_lshl_b32 s29, s2, 6")
    Z = [pool.alloc(4, 4) for _ in range(5)]
    for r in range(4):
        a(f"s_add_u32 s31, s29, 0x{r*64*16384:x}")
        a(f"buffer_load_dwordx4 v[{Z[r]}:{Z[r]+3}], v{v_go}, s[24:27], s31 offen")
    a(f"s_add_u32 s31, s29, 0x{256*16384:x}")
    a(f"buffer_load_dwordx4 v[{Z[4]}:{Z[4]+3}], v{v_go}, s[24:27], s31 offen")
    v_d2 = pool.alloc()
    t0 = pool.alloc()
    a(f"v_lshrrev_b32 v{v_d2}, 3, v{v_lane}")
    a(f"v_and_b32 v{t0}, 7, v{v_lane}")
    a(f"v_lshl_add_u32 v{v_d2}, v{t0}, 3, v{v_d2}")
    a(f"v_lshlrev_b32 v{v_d2}, 1, v{v_d2}")
    pool.release(t0)
    bA = [pool.alloc() for _ in range(8)]
    bB = [pool.alloc() for _ in range(8)]
    for q in range(8):
        a(f"v_mov_b32 v{bA[q]}, 0")
        a(f"v_mov_b32 v{bB[q]}, 0")
    for q in range(8):
        a(f"buffer_load_short_d16_hi v{bA[q]}, v{v_d2}, s[20:23], s15 offen offset:{q*128}")
        a(f"buffer_load_short_d16_hi v{bB[q]}, v{v_d2}, s[20:23], s28 offen offset:{q*128}")
    C = fft.newc()
    Mi = fft.newc()
    a(f"v_cmp_eq_u32 vcc, 0, v{v_kk}")
    for r in range(4):
        z = Z[r]
        a(f"s_waitcnt vmcnt({16 + 4 - r})")
        if r == 0:
            a(f"v_cndmask_b32 v{z+1}, v{z+1}, 0, vcc".replace(f"v{z+1}, 0, vcc", f"0, vcc") if False else f"v_cndmask_b32_e64 v{z+1}, v{z+1}, 0, vcc")
            a(f"v_cndmask_b32_e64 v{z+3}, v{z+3}, 0, vcc")
        a(f"v_sub_f32 v{C.base}, v{z}, v{z+3}")
        a(f"v_add_f32 v{C.base+1}, v{z+1}, v{z+2}")
        a(f"v_add_f32 v{Mi.base}, v{z}, v{z+3}")
        a(f"v_sub_f32 v{Mi.base+1}, v{z+2}, v{z+1}")
        a(f"ds_write_b64 v{v_a1}, v[{C.base}:{C.base+1}] offset:{ROW_STG + r*512}")
        a(f"ds_write_b64 v{v_a2}, v[{Mi.base}:{Mi.base+1}] offset:{ROW_STG + (256 - 64*r)*8}")
    lab = a.newlabel("K3I256")
    a("s_waitcnt vmcnt(16)")
    a("v_cmp_gt_u32 vcc, 4, v0")
    a("s_and_saveexec_b64 s[48:49], vcc")
    a(f"s_cbranch_execz {lab}")
    z = Z[4]
    a(f"v_mov_b32 v{C.base}, v{z}")
    a(f"v_mov_b32 v{C.base+1}, v{z+2}")
    a(f"ds_write_b64 v{v_a1}, v[{C.base}:{C.base+1}] offset:{ROW_STG + 256*8}")
    a.label(lab)
    a("s_mov_b64 exec, -1")
    a("s_waitcnt lgkmcnt(0)")
    a("s_barrier")
    fft.freec(C); fft.freec(Mi)
    for z in Z:
        pool.release(z, 4)
    for r in (v_p, v_kk, v_a1, v_a2, v_go):
        pool.release(r)
    v_in = pool.alloc()
    a(f"v_mul_u32_u24 v{v_in}, {ROW_PITCH}, v{v_wave}")
    a(f"v_add_u32 v{v_in}, v{v_in}, v{v_lane}")
    a(f"v_lshlrev_b32 v{v_in}, 3, v{v_in}")
    x = [fft.newc() for _ in range(8)]
    for m in range(8):
        a(f"ds_read_b64 v[{x[m].base}:{x[m].base+1}], v{v_in} offset:{ROW_STG + m*512}")
    pool.release(v_in)
    v_scr = pool.alloc()
    a(f"v_mul_u32_u24 v{v_scr}, {ROW_SCR}, v{v_wave}")
    a("s_waitcnt lgkmcnt(0)")
    X = fft512_wave(a, fft, pool, x, +1, v_lane, v_scr)
    a("s_waitcnt vmcnt(0) lgkmcnt(0)")
    t0 = pool.alloc(); t1 = pool.alloc(); t2 = pool.alloc(); t3 = pool.alloc()
    omA = pool.alloc(); omB = pool.alloc()
    a(f"v_sub_f32 v{t0}, 1.0, s36")
    a(f"v_sub_f32 v{t1}, 1.0, s37")
    a(f"v_cvt_pk_bf16_f32 v{t2}, v{t0}, v{t1}")
    a(f"v_lshlrev_b32 v{omA}, 16, v{t2}")
    a(f"v_and_b32 v{omB}, 0xffff0000, v{t2}")
    for q in range(8):
        xr, xi = X[q].base, X[q].base + 1
        a(f"v_cvt_pk_bf16_f32 v{t2}, v{xr}, v{xi}")
        a(f"v_lshlrev_b32 v{t0}, 16, v{t2}")
        a(f"v_and_b32 v{t1}, 0xffff0000, v{t2}")
        a(f"v_mul_f32 v{t0}, s36, v{t0}")
        a(f"v_mul_f32 v{t1}, s37, v{t1}")
        a(f"v_cvt_pk_bf16_f32 v{t2}, v{t0}, v{t1}")
        a(f"v_lshlrev_b32 v{t0}, 16, v{t2}")
        a(f"v_and_b32 v{t1}, 0xffff0000, v{t2}")
        a(f"v_mul_f32 v{bA[q]}, v{omA}, v{bA[q]}")
        a(f"v_mul_f32 v{bB[q]}, v{omB}, v{bB[q]}")
        a(f"v_cvt_pk_bf16_f32 v{t2}, v{bA[q]}, v{bB[q]}")
        a(f"v_lshlrev_b32 v{t3}, 16, v{t2}")
        a(f"v_and_b32 v{t2}, 0xffff0000, v{t2}")
        a(f"v_add_f32 v{t0}, v{t0}, v{t3}")
        a(f"v_add_f32 v{t1}, v{t1}, v{t2}")
        a(f"v_cvt_pk_bf16_f32 v{xr}, v{t0}, v{t1}")
        a(f"buffer_store_short v{xr}, v{v_d2}, s[16:19], s15 offen offset:{q*128}")
        a(f"buffer_store_short_d16_hi v{xr}, v{v_d2}, s[16:19], s28 offen offset:{q*128}")
    a("s_endpgm")
    return pool.hiwater


COL_LDS = 64 * 36 * 8


def k2_colfft(a):
    pool = RegPool(1, 128)
    fft = FFT(a, pool, "s30")
    a(f"""
    s_load_dwordx2 s[12:13], s[0:1], {KA['ws']}
    s_mov_b32 s30, 0x{f32bits(0.7071067811865476):08x}
    """)
    a("s_waitcnt lgkmcnt(0)")
    make_srd(a, 24, 12, 13, WS_T, WS_T_BYTES)
    make_srd(a, 44, 12, 13, WS_WT, WS_WT_BYTES)
    a("s_lshl_b32 s14, s2, 14")
    a("s_lshl_b32 s15, s2, 13")
    v_o8 = pool.alloc()
    v_o4 = pool.alloc()
    a(f"v_lshlrev_b32 v{v_o8}, 3, v0")
    a(f"v_lshlrev_b32 v{v_o4}, 2, v0")
    x = [fft.newc() for _ in range(8)]
    for m in range(8):
        a(f"s_add_u32 s31, s14, {m*2048}")
        a(f"buffer_load_dwordx2 v[{x[m].base}:{x[m].base+1}], v{v_o8}, s[24:27], s31 offen")
    w = [pool.alloc() for _ in range(8)]
    for n in range(8):
        a(f"s_add_u32 s31, s15, {n*1024}")
        a(f"buffer_load_dword v{w[n]}, v{v_o4}, s[44:47], s31 offen")
    t = pool.alloc(); u = pool.alloc(); v = pool.alloc()
    a_x1w = v_o8
    a_x1r = pool.alloc()
    a_x2w = pool.alloc()
    a_x2r = pool.alloc()
    a_x3w = pool.alloc()
    a_x3r = pool.alloc()
    i_tp = pool.alloc()
    i_tpp = pool.alloc()
    a(f"v_and_b32 v{i_tp}, 31, v0")
    a(f"v_and_b32 v{i_tpp}, 3, v0")
    a(f"v_lshrrev_b32 v{t}, 5, v0")
    a(f"v_lshl_add_u32 v{a_x1r}, v{t}, 8, v{i_tp}")
    a(f"v_lshlrev_b32 v{a_x1r}, 3, v{a_x1r}")
    a(f"v_mul_u32_u24 v{u}, 288, v{t}")
    a(f"v_add_u32 v{a_x2w}, v{u}, v{i_tp}")
    a(f"v_lshlrev_b32 v{a_x2w}, 3, v{a_x2w}")
    a(f"v_bfe_u32 v{v}, v0, 2, 3")
    a(f"v_mul_u32_u24 v{a_x2r}, 36, v{v}")
    a(f"v_add3_u32 v{a_x2r}, v{a_x2r}, v{u}, v{i_tpp}")
    a(f"v_lshlrev_b32 v{a_x2r}, 3, v{a_x2r}")
    a(f"v_lshrrev_b32 v{u}, 2, v{v}")
    a(f"v_lshl_add_u32 v{u}, v{u}, 2, v{i_tpp}")
    a(f"v_mul_u32_u24 v{u}, 33, v{u}")
    a(f"v_and_b32 v{v}, 3, v{v}")
    a(f"v_lshl_add_u32 v{v}, v{v}, 3, v{t}")
    a(f"v_add_u32 v{a_x3w}, v{u}, v{v}")
    a(f"v_lshlrev_b32 v{a_x3w}, 3, v{a_x3w}")
    a(f"v_lshrrev_b32 v{u}, 6, v0")
    a(f"v_lshlrev_b32 v{u}, 3, v{u}")
    a(f"v_bfe_u32 v{v}, v0, 5, 1")
    a(f"v_lshl_add_u32 v{u}, v{v}, 2, v{u}")
    a(f"v_mul_u32_u24 v{u}, 33, v{u}")
    a(f"v_and_b32 v{v}, 31, v0")
    a(f"v_add_u32 v{a_x3r}, v{u}, v{v}")
    a(f"v_lshlrev_b32 v{a_x3r}, 3, v{a_x3r}")
    for r in (t, u, v):
        pool.release(r)
    tw1 = fft.gen_twiddles(0, 2048)
    tw2 = fft.gen_twiddles(i_tp, 256)
    tw3 = fft.gen_twiddles(i_tpp, 32)
    pool.release(i_tp); pool.release(i_tpp)

    def wr(addr, X, offs):
        for q in range(len(X)):
            a(f"ds_write_b64 v{addr}, v[{X[q].base}:{X[q].base+1}] offset:{offs[q]}")
            fft.freec(X[q])

    def rd(addr, offs):
        y = [fft.newc() for _ in offs]
        for q in range(len(offs)):
            a(f"ds_read_b64 v[{y[q].base}:{y[q].base+1}], v{addr} offset:{offs[q]}")
        return y

    def sync():
        a("s_waitcnt lgkmcnt(0)")
        a("s_barrier")

    o_x1w = [q * 2048 for q in range(8)]
    o_x1r = [m * 256 for m in range(8)]
    o_x2w = [q * 36 * 8 for q in range(8)]
    o_x2r = [m * 32 for m in range(8)]
    o_x3w = [q * 8 * 33 * 8 for q in range(8)]
    o_x3r = [(e * 32 + tpp) * 33 * 8 for e in range(2) for tpp in range(4)]

    def tw_apply(X, tw, conj):
        for q in range(8):
            if q:
                X[q] = fft.twiddle(X[q], tw[q][0], tw[q][1], conj)
            else:
                X[q] = fft.materialize(X[q])
        return X

    a("s_waitcnt vmcnt(8)")
    X = tw_apply(fft.radix8(x, -1), tw1, True)
    wr(a_x1w, X, o_x1w)
    sync()
    y = rd(a_x1r, o_x1r)
    a("s_waitcnt lgkmcnt(0)")
    X = tw_apply(fft.radix8(y, -1), tw2, True)
    a("s_barrier")
    wr(a_x2w, X, o_x2w)
    sync()
    y = rd(a_x2r, o_x2r)
    a("s_waitcnt lgkmcnt(0)")
    X = tw_apply(fft.radix8(y, -1), tw3, True)
    a("s_barrier")
    wr(a_x3w, X, o_x3w)
    sync()
    y = rd(a_x3r, o_x3r)
    a("s_waitcnt lgkmcnt(0)")
    Y0 = fft.radix4(y[0:4], -1)
    Y1 = fft.radix4(y[4:8], -1)
    a("s_waitcnt vmcnt(0)")
    sc = f32bits(2.0 ** -21)
    wr_ = pool.alloc(); wi_ = pool.alloc()
    for e, Yl in enumerate((Y0, Y1)):
        for q4 in range(4):
            n = e + 2 * q4
            a(f"v_lshlrev_b32 v{wr_}, 16, v{w[n]}")
            a(f"v_and_b32 v{wi_}, 0xffff0000, v{w[n]}")
            a(f"v_mul_f32 v{wr_}, 0x{sc:08x}, v{wr_}")
            a(f"v_mul_f32 v{wi_}, 0x{sc:08x}, v{wi_}")
            Yl[q4] = fft.twiddle(Yl[q4], wr_, wi_, False)
    pool.release(wr_); pool.release(wi_)
    for r in w:
        pool.release(r)
    Z0 = [fft.materialize(v) for v in fft.radix4(Y0, +1)]
    Z1 = [fft.materialize(v) for v in fft.radix4(Y1, +1)]
    a("s_barrier")
    wr(a_x3r, Z0 + Z1, o_x3r)
    sync()
    y = rd(a_x3w, o_x3w)
    a("s_waitcnt lgkmcnt(0)")
    y = tw_apply(y, tw3, False)
    X = [fft.materialize(v) for v in fft.radix8(y, +1)]
    a("s_barrier")
    wr(a_x2r, X, o_x2r)
    sync()
    y = rd(a_x2w, o_x2w)
    a("s_waitcnt lgkmcnt(0)")
    y = tw_apply(y, tw2, False)
    X = [fft.materialize(v) for v in fft.radix8(y, +1)]
    a("s_barrier")
    wr(a_x1r, X, o_x1r)
    sync()
    y = rd(a_x1w, o_x1w)
    a("s_waitcnt lgkmcnt(0)")
    y = tw_apply(y, tw1, False)
    X = [fft.materialize(v) for v in fft.radix8(y, +1)]
    for m in range(8):
        a(f"s_add_u32 s31, s14, {m*2048}")
        a(f"buffer_store_dwordx2 v[{X[m].base}:{X[m].base+1}], v{v_o8}, s[24:27], s31 offen")
    a("s_endpgm")
    return pool.hiwater


def gemm_path(a, which, wg_base, stages):
    nmat = 2 if which == 1 else 1
    K = 512 if which == 1 else 1376
    pitchA = 1024 if which == 1 else 2752
    pitchB = 2752 if which == 1 else 1024
    NT = 22 if which == 1 else 8
    NC = (K + 63) // 64
    stage_bytes = 16384 + 8192 * nmat
    if which == 1:
        a(f"""
        s_load_dwordx2 s[4:5], s[0:1], {KA['x']}
        s_load_dwordx4 s[8:11], s[0:1], {KA['wg']}
        s_load_dwordx2 s[12:13], s[0:1], {KA['ws']}
        """)
    else:
        a(f"""
        s_load_dwordx2 s[8:9], s[0:1], {KA['wd']}
        s_load_dwordx2 s[12:13], s[0:1], {KA['ws']}
        """)
    v_lane, v_wave = 1, 2
    a(f"v_and_b32 v{v_lane}, 63, v0")
    a(f"v_lshrrev_b32 v{v_wave}, 6, v0")
    a(f"v_readfirstlane_b32 s3, v{v_wave}")
    a("s_waitcnt lgkmcnt(0)")
    if which == 1:
        make_srd(a, 16, 4, 5, 0, S * D * 2)
        make_srd(a, 20, 8, 9, 0, D * F * 2)
        make_srd(a, 24, 10, 11, 0, D * F * 2)
        make_srd(a, 28, 12, 13, WS_H, WS_H_BYTES)
    else:
        make_srd(a, 16, 12, 13, WS_H, WS_H_BYTES)
        make_srd(a, 20, 8, 9, 0, F * D * 2)
        make_srd(a, 28, 12, 13, WS_B, WS_B_BYTES)
    a(f"s_sub_u32 s14, s2, {wg_base}")
    a("s_and_b32 s15, s14, 15")
    a("s_lshr_b32 s14, s14, 4")
    a("s_and_b32 s32, s3, 1")
    a("s_lshr_b32 s33, s3, 1")
    a("s_lshl_b32 s34, s15, 7")
    a("s_lshl_b32 s35, s3, 5")
    a("s_add_u32 s34, s34, s35")
    a(f"s_mul_i32 s34, s34, {pitchA}")
    a("s_lshl_b32 s35, s3, 4")
    a(f"s_mul_i32 s35, s35, {pitchB}")
    a("s_lshl_b32 s36, s14, 7")
    a("s_add_u32 s35, s35, s36")
    a("s_lshl_b32 s36, s3, 12")
    a("s_lshl_b32 s37, s3, 11")
    a("s_add_u32 s37, s37, 16384")
    vA0, vA1, vB = 3, 4, 5
    t0, t1, t2 = 6, 7, 8
    a(f"v_lshrrev_b32 v{t0}, 3, v{v_lane}")
    a(f"v_and_b32 v{t1}, 7, v{v_lane}")
    a(f"v_lshrrev_b32 v{t2}, 4, v{v_lane}")
    a(f"s_movk_i32 s38, {pitchA}")
    a(f"v_mul_lo_u32 v{vA0}, v{t0}, s38")
    a(f"v_xor_b32 v{vA1}, v{t1}, v{t2}")
    a(f"v_lshl_add_u32 v{vA0}, v{vA1}, 4, v{vA0}")
    a(f"v_xor_b32 v{vA1}, 64, v{vA0}")
    a(f"v_mul_lo_u32 v{vA1}, v{t0}, s38")
    a(f"v_xor_b32 v{vB}, v{t1}, v{t2}")
    a(f"v_xor_b32 v{vB}, 4, v{vB}")
    a(f"v_lshl_add_u32 v{vA1}, v{vB}, 4, v{vA1}")
    a(f"s_movk_i32 s38, {pitchB}")
    a(f"v_mul_lo_u32 v{vB}, v{t0}, s38")
    a(f"v_and_b32 v{t2}, 1, v{t2}")
    a(f"v_lshlrev_b32 v{t2}, 2, v{t2}")
    a(f"v_xor_b32 v{t2}, v{t1}, v{t2}")
    a(f"v_lshl_add_u32 v{vB}, v{t2}, 4, v{vB}")
    vRA = [9, 10, 11, 12]
    vRW = 13
    a(f"v_and_b32 v{t0}, 31, v{v_lane}")
    a(f"v_lshrrev_b32 v{t1}, 5, v{v_lane}")
    a(f"v_bfe_u32 v{t2}, v{v_lane}, 1, 3")
    a(f"s_lshl_b32 s38, s32, 13")
    for ks in range(4):
        a(f"v_add_u32 v{vRA[ks]}, {2*ks}, v{t1}")
        a(f"v_xor_b32 v{vRA[ks]}, v{vRA[ks]}, v{t2}")
        a(f"v_lshlrev_b32 v{vRA[ks]}, 4, v{vRA[ks]}")
        a(f"v_lshl_add_u32 v{vRA[ks]}, v{t0}, 7, v{vRA[ks]}")
        a(f"v_add_u32 v{vRA[ks]}, s38, v{vRA[ks]}")
    a(f"v_bfe_u32 v{t0}, v{v_lane}, 2, 2")
    a(f"v_lshrrev_b32 v{t1}, 5, v{v_lane}")
    a(f"v_lshl_add_u32 v{t0}, v{t1}, 3, v{t0}")
    a(f"v_lshlrev_b32 v{vRW}, 7, v{t0}")
    a(f"v_bfe_u32 v{t0}, v{v_lane}, 4, 1")
    a(f"v_bfe_u32 v{t1}, v{v_lane}, 1, 1")
    a(f"v_lshl_add_u32 v{t0}, v{t0}, 1, v{t1}")
    a(f"s_lshl_b32 s38, s33, 2")
    a(f"v_add_u32 v{t0}, s38, v{t0}")
    a(f"v_bfe_u32 v{t1}, v{v_lane}, 3, 1")
    a(f"v_lshlrev_b32 v{t1}, 2, v{t1}")
    a(f"v_xor_b32 v{t0}, v{t0}, v{t1}")
    a(f"v_lshl_add_u32 v{vRW}, v{t0}, 4, v{vRW}")
    a(f"v_and_b32 v{t0}, 1, v{v_lane}")
    a(f"v_lshl_add_u32 v{vRW}, v{t0}, 3, v{vRW}")
    ACC = 64
    nacc = 2 * nmat
    for i in range(nacc * 16):
        a(f"v_mov_b32 v{ACC+i}, 0")
    fA = [[16, 20], [24, 28]]
    fW = [[32, 36], [40, 44]]

    def dma(c):
        st = (c % stages) * stage_bytes
        for jj in range(4):
            a(f"s_add_u32 s38, s34, {c*128 + jj*8*pitchA}")
            a(f"s_add_u32 m0, s36, {st + jj*1024}")
            a(f"buffer_load_dwordx4 v{vA0 if jj % 2 == 0 else vA1}, s[16:19], s38 offen lds")
        for mat in range(nmat):
            for jj in range(2):
                a(f"s_add_u32 s38, s35, {(c*64 + jj*8)*pitchB}")
                a(f"s_add_u32 m0, s37, {st + mat*8192 + jj*1024}")
                a(f"buffer_load_dwordx4 v{vB}, s[{20+4*mat}:{23+4*mat}], s38 offen lds")

    nd = 4 + 2 * nmat

    def rdfrags(c, ks, sl):
        st = (c % stages) * stage_bytes
        for mt in range(2):
            a(f"ds_read_b128 v[{fA[sl][mt]}:{fA[sl][mt]+3}], v{vRA[ks]} offset:{st + mt*4096}")
        for mat in range(nmat):
            for i in range(2):
                a(f"ds_read_b64_tr_b16 v[{fW[sl][mat]+2*i}:{fW[sl][mat]+2*i+1}], v{vRW} offset:{st + 16384 + mat*8192 + (ks*16+4*i)*128}")

    nrd = 2 + 2 * nmat
    for s in range(stages - 1):
        dma(s)
    for c in range(NC):
        nks = 4 if (c + 1) * 64 <= K else (K - c * 64) // 16
        later = min(stages - 2, NC - 1 - c)
        a(f"s_waitcnt vmcnt({nd*later})")
        a("s_barrier")
        if c + stages - 1 < NC:
            dma(c + stages - 1)
        rdfrags(c, 0, 0)
        for ks in range(nks):
            sl = ks % 2
            if ks + 1 < nks:
                rdfrags(c, ks + 1, (ks + 1) % 2)
                a(f"s_waitcnt lgkmcnt({nrd})")
            else:
                a("s_waitcnt lgkmcnt(0)")
            for mt in range(2):
                for mat in range(nmat):
                    acc = ACC + (mt * nmat + mat) * 16
                    a(f"v_mfma_f32_32x32x16_bf16 v[{acc}:{acc+15}], v[{fW[sl][mat]}:{fW[sl][mat]+3}], v[{fA[sl][mt]}:{fA[sl][mt]+3}], v[{acc}:{acc+15}]")
    pitchO = 2752 if which == 1 else 1024
    vst = 3
    a(f"v_and_b32 v{t0}, 31, v{v_lane}")
    a(f"s_movk_i32 s38, {pitchO}")
    a(f"v_mul_lo_u32 v{vst}, v{t0}, s38")
    a(f"v_lshrrev_b32 v{t1}, 5, v{v_lane}")
    a(f"v_lshl_add_u32 v{vst}, v{t1}, 4, v{vst}")
    a("s_lshl_b32 s38, s15, 7")
    a("s_lshl_b32 s39, s32, 6")
    a("s_add_u32 s38, s38, s39")
    a(f"s_mul_i32 s38, s38, {pitchO}")
    a("s_lshl_b32 s39, s14, 7")
    a("s_add_u32 s38, s38, s39")
    a("s_lshl_b32 s39, s33, 6")
    a("s_add_u32 s38, s38, s39")
    lab_end = a.newlabel("GEND")
    if which == 1:
        a("s_lshl_b32 s39, s14, 1")
        a("s_add_u32 s39, s39, s33")
        a("s_cmp_ge_u32 s39, 43")
        a(f"s_cbranch_scc1 {lab_end}")
    l2e = f32bits(-1.4426950408889634)
    Hq = 16
    for mt in range(2):
        if which == 1:
            G = ACC + (mt * 2) * 16
            U = G + 16
            g0, g1, s0, s1, tp = 6, 7, 8, 9, 10
            for pr in range(8):
                i = 2 * pr
                a(f"v_cvt_pk_bf16_f32 v{tp}, v{G+i}, v{G+i+1}")
                a(f"v_lshlrev_b32 v{g0}, 16, v{tp}")
                a(f"v_and_b32 v{g1}, 0xffff0000, v{tp}")
                a(f"v_mul_f32 v{s0}, 0x{l2e:08x}, v{g0}")
                a(f"v_mul_f32 v{s1}, 0x{l2e:08x}, v{g1}")
                a(f"v_exp_f32 v{s0}, v{s0}")
                a(f"v_exp_f32 v{s1}, v{s1}")
                a(f"v_add_f32 v{s0}, 1.0, v{s0}")
                a(f"v_add_f32 v{s1}, 1.0, v{s1}")
                a(f"v_rcp_f32 v{s0}, v{s0}")
                a(f"v_rcp_f32 v{s1}, v{s1}")
                a(f"v_mul_f32 v{s0}, v{g0}, v{s0}")
                a(f"v_mul_f32 v{s1}, v{g1}, v{s1}")
                a(f"v_cvt_pk_bf16_f32 v{tp}, v{s0}, v{s1}")
                a(f"v_lshlrev_b32 v{s0}, 16, v{tp}")
                a(f"v_and_b32 v{s1}, 0xffff0000, v{tp}")
                a(f"v_cvt_pk_bf16_f32 v{tp}, v{U+i}, v{U+i+1}")
                a(f"v_lshlrev_b32 v{g0}, 16, v{tp}")
                a(f"v_and_b32 v{g1}, 0xffff0000, v{tp}")
                a(f"v_mul_f32 v{s0}, v{s0}, v{g0}")
                a(f"v_mul_f32 v{s1}, v{s1}, v{g1}")
                a(f"v_cvt_pk_bf16_f32 v{Hq+pr}, v{s0}, v{s1}")
        else:
            G = ACC + mt * 16
            for pr in range(8):
                a(f"v_cvt_pk_bf16_f32 v{Hq+pr}, v{G+2*pr}, v{G+2*pr+1}")
        for qp in range(2):
            b = Hq + 4 * qp
            a(f"v_permlane32_swap_b32 v{b}, v{b+2}")
            a(f"v_permlane32_swap_b32 v{b+1}, v{b+3}")
        if mt == 1:
            a(f"s_add_u32 s38, s38, {32*pitchO}")
        for qp in range(2):
            b = Hq + 4 * qp
            a(f"buffer_store_dwordx4 v[{b}:{b+3}], v{vst}, s[28:31], s38 offen offset:{32*qp}")
    a.label(lab_end)
    a("s_endpgm")
    return ACC + nacc * 16, stages * stage_bytes


def kernel_desc(name, vgpr, sgpr=64):
    acc = (vgpr + 3) // 4 * 4
    return f"""
.amdhsa_kernel {name}
  .amdhsa_next_free_vgpr {vgpr}
  .amdhsa_next_free_sgpr {sgpr}
  .amdhsa_accum_offset {acc}
  .amdhsa_group_segment_fixed_size 0
  .amdhsa_kernarg_size 88
  .amdhsa_user_sgpr_count 2
  .amdhsa_user_sgpr_kernarg_segment_ptr 1
  .amdhsa_system_sgpr_workgroup_id_x 1
.end_amdhsa_kernel
"""


def main(out):
    header = open(f"cdna_kernels/{NAME}.s.ref").read().split("; Override launch")[0]
    a = Asm()
    N1F, N1G = 256, 16 * 22
    a.raw(".text")
    a.raw(".globl k1_kernel\n.p2align 8\n.type k1_kernel,@function")
    a.label("k1_kernel")
    a(f"s_cmp_ge_u32 s2, {N1F + N1G}")
    a("s_cbranch_scc1 K1_EXIT")
    a(f"s_cmp_ge_u32 s2, {N1F}")
    a("s_cbranch_scc1 K1_GEMM")
    v1a = k1_rowfft(a)
    a.label("K1_GEMM")
    v1b, lds1 = gemm_path(a, 1, N1F, CFG["g1_stages"])
    a.label("K1_EXIT")
    a("s_endpgm")
    lds1 = max(lds1, ROW_LDS)
    N2F, N2G = 257, 16 * 8
    a.raw(".globl k2_kernel\n.p2align 8\n.type k2_kernel,@function")
    a.label("k2_kernel")
    a(f"s_cmp_ge_u32 s2, {N2F + N2G}")
    a("s_cbranch_scc1 K2_EXIT")
    a(f"s_cmp_ge_u32 s2, {N2F}")
    a("s_cbranch_scc1 K2_GEMM")
    v2a = k2_colfft(a)
    a.label("K2_GEMM")
    v2b, lds2 = gemm_path(a, 2, N2F, CFG["g2_stages"])
    a.label("K2_EXIT")
    a("s_endpgm")
    lds2 = max(lds2, COL_LDS)
    a.raw(".globl k3_kernel\n.p2align 8\n.type k3_kernel,@function")
    a.label("k3_kernel")
    a("s_cmp_ge_u32 s2, 256")
    a("s_cbranch_scc1 K3_EXIT")
    v3 = k3_body(a)
    a.label("K3_EXIT")
    a("s_endpgm")
    lds3 = ROW_LDS
    txt = header
    txt += f"; @launch kernel=k1_kernel grid=({N1F+N1G},1,1) block=(256,1,1) lds={lds1}\n"
    txt += f"; @launch kernel=k2_kernel grid=({N2F+N2G},1,1) block=(256,1,1) lds={lds2}\n"
    txt += f"; @launch kernel=k3_kernel grid=(256,1,1) block=(256,1,1) lds={lds3}\n"
    txt += '.amdgcn_target "amdgcn-amd-amdhsa--gfx950"\n'
    txt += a.text()
    txt += '.section .rodata,"a"\n.p2align 6\n'
    txt += kernel_desc("k1_kernel", max(v1a, v1b))
    txt += ".p2align 6\n"
    txt += kernel_desc("k2_kernel", max(v2a, v2b))
    txt += ".p2align 6\n"
    txt += kernel_desc("k3_kernel", v3)
    open(out, "w").write(txt)
    print("vgprs", v1a, v1b, v2a, v2b, v3, "lds", lds1, lds2, lds3)


if __name__ == "__main__":
    main(sys.argv[1] if len(sys.argv) > 1 else f"cdna_kernels/{NAME}.s")
```
